```python
import torch

def _softmax(x, axis=-1):
    return torch.softmax(x, dim=axis)
def _gelu(x):
    return torch.nn.functional.gelu(x, approximate="tanh")
def _silu(x):
    return torch.nn.functional.silu(x)
def _sigmoid(x):
    return torch.sigmoid(x)
def _layernorm(x, axis=-1, eps=1e-5):
    m = x.mean(dim=axis, keepdim=True)
    v = x.var(dim=axis, keepdim=True, unbiased=False)
    return (x - m) / torch.sqrt(v + eps)
def _scatter_add(tgt, idx, src, axis=0):
    return tgt.clone().index_add_(axis, idx, src)
def _segment_sum(src, seg, n):
    out = torch.zeros((n,) + src.shape[1:], dtype=src.dtype)
    return out.index_add_(0, seg, src)
def _pad(x, pw):
    flat = tuple(v for pair in reversed(pw) for v in pair)
    return torch.nn.functional.pad(x, flat)

kernel_name = 'recurrent_scan__ssm_conv_s5__dense_activation_mish__prompt'

def setup_inputs():

    _w = (lambda a: (lambda t: t.to(torch.bfloat16) if t.is_floating_point() else t)(torch.as_tensor(a)))
    def _A_setup():
        B, S, D = 1, 2048, 512
        P = D
        Lambda_re = -0.5 * (lambda _x: torch.exp(torch.as_tensor(_x)))((lambda *s: torch.randn(*s, dtype=torch.bfloat16) * 0.8)(P))
        Lambda_im = (lambda *s: torch.randn(*s, dtype=torch.bfloat16) * 0.8)(P) * 1.0
        B_re = (lambda *s: torch.randn(*s, dtype=torch.bfloat16) * 0.8)(P, D) * (D ** -0.5)
        B_im = (lambda *s: torch.randn(*s, dtype=torch.bfloat16) * 0.8)(P, D) * (D ** -0.5)
        C_re = (lambda *s: torch.randn(*s, dtype=torch.bfloat16) * 0.8)(D, P) * (P ** -0.5)
        C_im = (lambda *s: torch.randn(*s, dtype=torch.bfloat16) * 0.8)(D, P) * (P ** -0.5)
        log_dt = (lambda *s: torch.randn(*s, dtype=torch.bfloat16) * 0.8)(P) * 0.3 - 2.0
        Dskip = (lambda *s: torch.randn(*s, dtype=torch.bfloat16) * 0.4)(D)
        return {
            "x": _w((lambda *s: torch.randn(*s, dtype=torch.bfloat16) * 0.05)(B, S, D)),
            "Lambda_re": _w(Lambda_re),
            "Lambda_im": _w(Lambda_im),
            "B_re": _w(B_re),
            "B_im": _w(B_im),
            "C_re": _w(C_re),
            "C_im": _w(C_im),
            "log_dt": _w(log_dt),
            "Dskip": _w(Dskip),
        }
    _A_in = _A_setup()

    def _B_setup():
        B, S, D, F = 1, 2048, 512, 1792
        return {
            "x": _w((lambda *s: torch.randn(*s, dtype=torch.bfloat16) * 0.05)(B, S, D)),
            "w1": _w((lambda *s: torch.randn(*s, dtype=torch.bfloat16) * 0.8)(D, F) * (D ** -0.5)),
            "b1": _w((lambda *s: torch.randn(*s, dtype=torch.bfloat16) * 0.8)(F)),
            "w2": _w((lambda *s: torch.randn(*s, dtype=torch.bfloat16) * 0.1)(F, D) * (F ** -0.5)),
        }
    _B_in = _B_setup()

    return {
        "A_x": _A_in["x"],
        "A_Lambda_re": _A_in["Lambda_re"],
        "A_Lambda_im": _A_in["Lambda_im"],
        "A_B_re": _A_in["B_re"],
        "A_B_im": _A_in["B_im"],
        "A_C_re": _A_in["C_re"],
        "A_C_im": _A_in["C_im"],
        "A_log_dt": _A_in["log_dt"],
        "A_Dskip": _A_in["Dskip"],
        "B_x": _B_in["x"],
        "B_w1": _B_in["w1"],
        "B_b1": _B_in["b1"],
        "B_w2": _B_in["w2"],
    }

def reference(A_x, A_Lambda_re, A_Lambda_im, A_B_re, A_B_im, A_C_re, A_C_im, A_log_dt, A_Dskip, B_x, B_w1, B_b1, B_w2):
    def _A_ref(x, Lambda_re, Lambda_im, B_re, B_im, C_re, C_im, log_dt, Dskip):
        Bsz, L, H = x.shape
        Lam = Lambda_re + 1j * Lambda_im
        Bmat = B_re + 1j * B_im
        Cmat = C_re + 1j * C_im
        dt = torch.exp(log_dt)
        Lam_bar = torch.exp(dt * Lam)
        B_bar = ((Lam_bar - 1.0) / Lam)[:, None] * Bmat
        Bu = torch.einsum("bld,pd->blp", x + 0j, B_bar)
        h = torch.zeros_like(Bu[:, 0, :])
        hs = []
        for t in range(L):
            h = Lam_bar[None, :] * h + Bu[:, t, :]
            hs.append(h)
        hseq = torch.stack(hs, 1)
        y = 2.0 * torch.einsum("blp,dp->bld", hseq, Cmat).real + x * Dskip[None, None, :]
        return y

    def _B_ref(x, w1, b1, w2):
        h = torch.einsum("bsd,df->bsf", x, w1) + b1
        sp = torch.log1p(torch.exp(-torch.abs(h))) + torch.where(h > 0, h, torch.zeros_like(h))
        act = h * torch.tanh(sp)
        return torch.einsum("bsf,fd->bsd", act, w2)

    x = A_x
    xn = _layernorm(x, axis=-1)
    s = _A_ref(xn, A_Lambda_re, A_Lambda_im, A_B_re, A_B_im, A_C_re, A_C_im, A_log_dt, A_Dskip)
    g = _silu(_B_ref(xn, B_w1, B_b1, B_w2))
    return x + s * g
```

```python
KN = "recurrent_scan__ssm_conv_s5__dense_activation_mish__prompt_kernel"
HEADER = open('recurrent_scan__ssm_conv_s5__dense_activation_mish__prompt.s.ref').read().split('; Override launch')[0]

class Asm:
    def __init__(self):
        self.lines = []
    def __call__(self, s):
        for l in s.strip('\n').split('\n'):
            self.lines.append('    ' + l.strip() if not l.strip().endswith(':') else l.strip())
    def text(self):
        return '\n'.join(self.lines) + '\n'

def kernel_desc(name, vgpr, sgpr=102, accum=None):
    if accum is None: accum = (vgpr+3)//4*4
    return f'''.amdhsa_kernel {name}
  .amdhsa_next_free_vgpr {vgpr}
  .amdhsa_next_free_sgpr {sgpr}
  .amdhsa_accum_offset {accum}
  .amdhsa_group_segment_fixed_size 0
  .amdhsa_kernarg_size 128
  .amdhsa_user_sgpr_count 2
  .amdhsa_user_sgpr_kernarg_segment_ptr 1
  .amdhsa_system_sgpr_workgroup_id_x 1
.end_amdhsa_kernel
'''

def make_file(kernels):
    s = HEADER
    if len(kernels) == 1 and kernels[0]['name'] == KN:
        k = kernels[0]
        s += f"; @launch grid=({k['grid']},1,1) block=({k['block']},1,1) lds={k['lds']}\n"
    else:
        for k in kernels:
            s += f"; @launch kernel={k['name']} grid=({k['grid']},1,1) block=({k['block']},1,1) lds={k['lds']}\n"
    s += '.amdgcn_target "amdgcn-amd-amdhsa--gfx950"\n.text\n'
    seen = []
    for k in kernels:
        if k['name'] in seen: continue
        seen.append(k['name'])
        s += f".globl {k['name']}\n.p2align 8\n.type {k['name']},@function\n{k['name']}:\n" + k['body'] + "\n"
    s += '.section .rodata,"a"\n'
    seen = []
    for k in kernels:
        if k['name'] in seen: continue
        seen.append(k['name'])
        s += '.p2align 6\n' + kernel_desc(k['name'], k['vgpr'], k.get('sgpr',102), k.get('accum'))
    return s
```

```python
import re
REG = re.compile(r'^(-|\|)?(?:abs\()?([vas])(?:(\d+)|\[(\d+):(\d+)\])\)?\|?$')
def regs_of(op):
    op = op.strip()
    if op in ('vcc','exec','m0','scc'): return [op]
    if op in ('vcc_lo','vcc_hi'): return ['vcc']
    m = REG.match(op)
    if not m: return []
    k = m.group(2)
    if m.group(3) is not None: return [(k,int(m.group(3)))]
    return [(k,i) for i in range(int(m.group(4)), int(m.group(5))+1)]
TRANS = ('v_exp_f32','v_log_f32','v_rcp_f32','v_rsq_f32','v_sqrt_f32','v_sin_f32','v_cos_f32')
class I:
    __slots__=('text','kind','w','r','srcc','tok','need','mn','wide')
    def __init__(s, text, tok=None, need=()):
        s.text=text.strip(); s.tok=tok; s.need=tuple(need); s.srcc=set(); s.wide=False
        t = s.text.split(';')[0].strip()
        if t.endswith(':') or t.startswith('.') or not t:
            s.kind='label'; s.mn=t; s.w=set(); s.r=set(); return
        parts = t.split(None,1); mn = parts[0]; s.mn = mn
        rest = parts[1] if len(parts)>1 else ''
        ops = [o.strip() for o in rest.split(',')] if rest else []
        mods=''
        if ops:
            sp = ops[-1].split(None,1)
        rest2 = re.sub(r'\b(op_sel|op_sel_hi|neg_lo|neg_hi|quad_perm):\[[^\]]*\]','',rest)
        ops = [o.strip() for o in rest2.split(',')] if rest2 else []
        if ops:
            sp = ops[-1].split(None,1); ops[-1]=sp[0]; mods = sp[1] if len(sp)>1 else ''
        R = [regs_of(o) for o in ops]
        flat = lambda L: set(x for l in L for x in l)
        base = mn.replace('_e32','').replace('_e64','')
        if mn.startswith('v_mfma'):
            s.kind='mfma'; s.w=flat(R[:1]); s.r=flat(R[1:]); s.srcc=flat(R[3:4])
        elif mn.startswith('ds_read'):
            s.kind='dsr'; s.w=flat(R[:1]); s.r=flat(R[1:])
        elif mn.startswith('ds_write'):
            s.kind='dsw'; s.w=set(); s.r=flat(R)
        elif mn.startswith(('buffer_load','global_load')):
            if ' lds' in ' '+mods:
                s.kind='dma'; s.w=set(); s.r=flat(R)|{'m0'}
            else:
                s.kind='vld'; s.w=flat(R[:1]); s.r=flat(R[1:])
        elif mn.startswith(('buffer_store','global_store')):
            s.kind='vst'; s.w=set(); s.r=flat(R); s.wide = mn.endswith(('x3','x4'))
            s.srcc = flat(R[:1]) if mn.startswith('buffer') else flat(R[1:2])
        elif mn.startswith('v_permlane'):
            s.kind='perm'; s.w=flat(R[:2]); s.r=flat(R[:2])
        elif mn.startswith(('v_readfirstlane','v_readlane')):
            s.kind='rfl'; s.w=flat(R[:1]); s.r=flat(R[1:])
        elif mn.startswith('v_'):
            s.kind = 'trans' if base in TRANS else ('dot' if mn.startswith('v_dot') else 'valu')
            s.w=flat(R[:1]); s.r=flat(R[1:])
            if base.startswith(('v_fmac','v_dot2c','v_writelane')): s.r |= s.w
            if mn.startswith('v_dot') : s.srcc = flat(R[3:4]) if len(R)>3 else set(s.w)
            if base.startswith(('v_add_co','v_addc_co','v_sub_co')): s.w |= flat(R[1:2])
        elif mn in ('s_waitcnt','s_barrier','s_nop','s_endpgm','s_setprio','s_sleep'):
            s.kind={'s_waitcnt':'wait','s_barrier':'bar'}.get(mn,'nop'); s.w=set(); s.r=set()
        elif mn.startswith(('s_cbranch','s_branch')):
            s.kind='br'; s.w=set(); s.r=set()
        elif mn.startswith(('s_load','s_memtime','s_memrealtime')):
            s.kind='smem'; s.w=flat(R[:1]); s.r=flat(R[1:])
        elif mn.startswith('s_cmp'):
            s.kind='salu'; s.w={'scc'}; s.r=flat(R)
        elif mn.startswith('s_'):
            s.kind='salu'; s.w=flat(R[:1]); s.r=flat(R[1:])
        else:
            raise Exception('unknown instr '+t)
    def states(s):
        if s.kind=='label': return 0
        if s.mn=='s_nop': return int(s.text.split()[1])+1
        return 1
VAL = ('valu','trans','dot','perm','rfl')
def need_states(p, c):
    n=0
    isv = lambda x: isinstance(x,tuple) and x[0] in 'va'
    iss = lambda x: (isinstance(x,tuple) and x[0]=='s') or x=='vcc'
    raw = p.w & c.r; waw = p.w & c.w
    if p.kind=='mfma':
        if c.kind=='mfma':
            if p.w & (c.r - c.srcc): n=max(n,12)
            elif p.w & c.srcc and p.w != c.srcc: n=max(n,10)
            elif waw and p.w != c.srcc: n=max(n,10)
        elif raw or waw: n=max(n,12)
        if c.kind in VAL and (p.srcc & c.w): n=max(n,7)
    if p.kind in VAL:
        vraw = [x for x in raw if isv(x)]; sraw=[x for x in raw if iss(x)]
        if c.kind=='mfma' and vraw: n=max(n,2)
        if c.kind=='perm' and vraw: n=max(n,2)
        if c.kind=='rfl' and vraw: n=max(n,1)
        if p.kind=='trans' and vraw and c.kind!='trans': n=max(n,1)
        if p.kind=='trans' and vraw and c.kind=='trans': n=max(n,1)
        if p.kind=='dot' and (vraw or waw):
            if not (c.kind=='dot' and c.mn==p.mn and not (p.w & (c.r-c.srcc))): n=max(n,3)
        if sraw:
            if c.kind in ('vld','vst','dma'): n=max(n,5)
            elif c.kind in VAL: n=max(n,2)
            elif c.kind in ('salu','br'): n=max(n,1)
        if 'vcc' in p.w and c.kind=='br' and 'vcc' in c.mn: n=max(n,1)
    if p.kind=='vst' and p.wide and (p.srcc & c.w): n=max(n,2)
    if p.kind=='salu' and 'm0' in p.w and c.kind=='dma': n=max(n,1)
    return n
def finalize(prog, verbose=False):
    out=[]; vm=[]; lg=[]
    done=set(); stats=dict(wait=0,nop=0,nopstates=0)
    def need_q(q, ins):
        k=-1
        touch = ins.r | ins.w
        for i,e in enumerate(q):
            if (e.w & touch) or (e.tok is not None and e.tok in ins.need): k=i
        return k
    alltok=set(i.tok for i in prog if i.tok is not None)
    seen=set()
    for ins in prog:
        for t in ins.need:
            assert t in seen, f'token {t} needed before issue at {ins.text}'
        if ins.tok is not None: seen.add(ins.tok)
        if ins.kind=='wait':
            m=re.search(r'vmcnt\((\d+)\)',ins.text)
            if m: n=int(m.group(1)); vm=vm[len(vm)-n:] if n<len(vm) and n>0 else ([] if n==0 else vm)
            m=re.search(r'lgkmcnt\((\d+)\)',ins.text)
            if m: n=int(m.group(1)); lg=lg[len(lg)-n:] if n<len(lg) and n>0 else ([] if n==0 else lg)
        else:
            kv=need_q(vm,ins); kl=need_q(lg,ins); w=[]
            if kv>=0:
                n=min(len(vm)-1-kv,63); w.append(f'vmcnt({n})'); vm=vm[len(vm)-n:] if n else []
            if kl>=0:
                n=min(len(lg)-1-kl,15); w.append(f'lgkmcnt({n})'); lg=lg[len(lg)-n:] if n else []
            if w:
                out.append(I('s_waitcnt '+' '.join(w))); stats['wait']+=1
        if ins.kind!='label':
            dist=0; req=0
            for p in reversed(out):
                if dist>=20: break
                n=need_states(p,ins)
                if n-dist>req: req=n-dist
                dist+=p.states()
            if req>0:
                out.append(I(f's_nop {req-1}')); stats['nop']+=1; stats['nopstates']+=req
        out.append(ins)
        if ins.kind in ('vld','vst','dma'):
            vm.append(ins); assert len(vm)<=63, f'too many vm outstanding at {ins.text}'
        if ins.kind in ('dsr','dsw'): lg.append(ins)
    if verbose: print(stats, len(out))
    return out
def text(prog):
    return '\n'.join((i.text if i.kind=='label' else '    '+i.text) for i in prog)+'\n'
```

```python
import sys, struct, math
sys.path.insert(0,'work')
from ir import I, finalize, text
import asmlib
from asmlib import KN, make_file

def f2u(x): return struct.unpack('<I', struct.pack('<f', x))[0]
def bf16(x):
    u=f2u(x); return (u+0x7fff+((u>>16)&1))>>16
def bf2f(h): return struct.unpack('<f', struct.pack('<I', h<<16))[0]
LOG2E=1.4426950408889634; LN2=0.6931471805599453

DEF = dict(map1='r2c4', map2='r8', LEAD=5, stamps=False, rot=True, touch=True, codepf=True)

FLAG_BASE=0x1000; AGG_BASE=0x40000; STAT_BASE=0x80000; A_BASE=0x100000; WS_SIZE=0x1000000
STAMP_BASE=0xE00000
OOB=0x40000000
KTAG=0x9E3779B1
SLOT=16384
WRING=[1,2,3,4,0]; PRING=[5,6,7,8]; SCR=9
XSLOT=[5,6,3,7,4,8,0,9]
X=0; ACC0=128; ACC1=160
vBC=192; vW1=196; vW2=200; vAB=204; vT1=208; vT2=210; vL16=211
vLAM=212; vCO=214; vL16P=216; vL128=218; vL1K=220; vLSEG=222; vPRE=224
vBI=226; vK=236; T=240
FB=224
sX=36; sB=40; sW1=44; sW2=48; sCR=52; sCI=56; sWS=60; sAG=64; sOUT=68
sW=72; sW4K=73; sTAG=74; sPI=75; sPJ=76; sRB=77; sCB=78
sKX=79
sKW=83
sT=87; sT2=88
sW1A=89; sW1B=90; sBB=91; sPB=92; sCB0=93; sCB1=94
sSA=95; sSB=96; sSH=97; sFL=98; sA0=99; sA1=100; sCNT=101
sMASK=4
sSTAMP=18

def gen(**kw):
    o=dict(DEF); o.update(kw)
    P=[]; slow=[]
    def e(s, tok=None, need=()):
        L=[l for l in s.strip().split('\n') if l.strip()]
        for k,l in enumerate(L):
            P.append(I(l, tok=tok if k==len(L)-1 else None, need=need if k==0 else ()))
    def mk(s, tok=None, need=()):
        L=[l for l in s.strip().split('\n') if l.strip()]
        return [I(l, tok=tok if k==len(L)-1 else None, need=need if k==0 else ()) for k,l in enumerate(L)]
    nst=[0]
    stampnames=[]
    def stamp(name):
        if not o['stamps']: return []
        if name not in o['stamps']: return []
        k=nst[0]; nst[0]+=1; assert k<9; stampnames.append(name)
        return mk(f's_memrealtime s[{sSTAMP+2*k}:{sSTAMP+2*k+1}]')
    srd=lambda s:f's[{s}:{s+3}]'
    vr=lambda a,n=4:f'v[{a}:{a+n-1}]'
    ar=lambda a,n=4:f'a[{a}:{a+n-1}]'

    e(f'''
    s_cmp_ge_u32 s2, 256
    s_cbranch_scc1 L_end
    s_load_dwordx16 s[4:19], s[0:1], 0
    s_load_dwordx16 s[20:35], s[0:1], 64
    ''')
    if o['stamps']: e('s_memrealtime s[0:1]')
    vl=130; vh=131; vrho=132; t0,t1,t2,t3=133,134,135,136; vXD=140
    e(f'''
    v_lshrrev_b32 v{t0}, 6, v0
    v_and_b32 v{vl}, 63, v0
    v_readfirstlane_b32 s{sW}, v{t0}
    s_and_b32 s{sT}, s2, 7
    s_lshr_b32 s{sT2}, s2, 3
    ''')
    if o['codepf']:
        e(f'''
        s_getpc_b64 s[{sKX+1}:{sKX+2}]
        s_lshl_b32 s{sCNT}, s{sT2}, 10
        v_lshl_add_u32 v{t1}, v0, 2, s{sCNT}
        global_load_dword v{T+15}, v{t1}, s[{sKX+1}:{sKX+2}]
        ''')
    if o['map1']=='r2c4':
        e(f'''s_lshr_b32 s{sPI}, s{sT}, 2
        s_lshl_b32 s{sPI}, s{sPI}, 3
        s_lshr_b32 s{sCNT}, s{sT2}, 2
        s_add_u32 s{sPI}, s{sPI}, s{sCNT}
        s_and_b32 s{sPJ}, s{sT}, 3
        s_lshl_b32 s{sPJ}, s{sPJ}, 2
        s_and_b32 s{sCNT}, s{sT2}, 3
        s_add_u32 s{sPJ}, s{sPJ}, s{sCNT}''')
    elif o['map1']=='r4c2':
        e(f'''s_lshr_b32 s{sPI}, s{sT}, 1
        s_lshl_b32 s{sPI}, s{sPI}, 2
        s_lshr_b32 s{sCNT}, s{sT2}, 3
        s_add_u32 s{sPI}, s{sPI}, s{sCNT}
        s_and_b32 s{sPJ}, s{sT}, 1
        s_lshl_b32 s{sPJ}, s{sPJ}, 3
        s_and_b32 s{sCNT}, s{sT2}, 7
        s_add_u32 s{sPJ}, s{sPJ}, s{sCNT}''')
    elif o['map1']=='r8':
        e(f'''s_lshl_b32 s{sPI}, s{sT}, 1
        s_lshr_b32 s{sCNT}, s{sT2}, 4
        s_add_u32 s{sPI}, s{sPI}, s{sCNT}
        s_and_b32 s{sPJ}, s{sT2}, 15''')
    if o['map2']=='r8':
        e(f'''s_lshl_b32 s{sRB}, s{sT}, 2
        s_lshr_b32 s{sCNT}, s{sT2}, 3
        s_add_u32 s{sRB}, s{sRB}, s{sCNT}
        s_and_b32 s{sCB}, s{sT2}, 7''')
    elif o['map2']=='r4c2':
        e(f'''s_lshr_b32 s{sRB}, s{sT}, 1
        s_lshl_b32 s{sRB}, s{sRB}, 3
        s_lshr_b32 s{sCNT}, s{sT2}, 2
        s_add_u32 s{sRB}, s{sRB}, s{sCNT}
        s_and_b32 s{sCB}, s{sT}, 1
        s_lshl_b32 s{sCB}, s{sCB}, 2
        s_and_b32 s{sCNT}, s{sT2}, 3
        s_add_u32 s{sCB}, s{sCB}, s{sCNT}''')
    e(f'''
    v_lshlrev_b32 v{vL16}, 4, v{vl}
    v_lshrrev_b32 v{vh}, 5, v{vl}
    v_and_b32 v{vrho}, 31, v{vl}
    v_lshrrev_b32 v{t0}, 4, v{vl}
    v_and_b32 v{t1}, 7, v{vl}
    v_xor_b32 v{t0}, v{t0}, v{t1}
    v_lshlrev_b32 v{t0}, 4, v{t0}
    v_xor_b32 v{t1}, 64, v{t0}
    v_bfe_u32 v{t2}, v{vl}, 3, 2
    v_lshl_add_u32 v{t2}, v{vh}, 4, v{t2}
    v_lshl_add_u32 v{vXD}, v{t2}, 10, v{t0}
    v_lshl_add_u32 v{vXD+1}, v{t2}, 10, v{t1}
    v_add_u32 v{vXD+2}, {2*3072}, v{vXD}
    v_add_u32 v{vXD+3}, {3*3072}, v{vXD+1}
    v_add_u32 v{vXD+1}, 3072, v{vXD+1}
    s_lshl_b32 s{sW4K}, s{sW}, 12
    ''')
    if o['rot']: e(f's_add_u32 s{sCNT}, s{sPI}, s{sPJ}')
    else: e(f's_mov_b32 s{sCNT}, 0')
    for c in range(4):
        e(f'''s_add_u32 s{sT}, s{sCNT}, {c}
        s_and_b32 s{sT}, s{sT}, 3
        s_lshl_b32 s{sKX+c}, s{sT}, 8
        s_mul_i32 s{sKW+c}, s{sT}, {128*3584}''')
    e(f'''
    s_lshl_b32 s{sA0}, s{sPI}, 2
    s_add_u32 s{sA0}, s{sA0}, s{sW}
    s_lshl_b32 s{sA1}, s{sA0}, 15
    s_waitcnt lgkmcnt(0)
    s_mov_b32 s{sWS}, s34
    s_mov_b32 s{sWS+1}, s35
    s_mov_b32 s{sWS+2}, {WS_SIZE}
    s_mov_b32 s{sWS+3}, 0x20000
    s_mov_b32 s{sX}, s4
    s_mov_b32 s{sX+1}, s5
    s_mov_b32 s{sX+2}, {2048*1024}
    s_mov_b32 s{sX+3}, 0x20000
    ''')
    vE=144; vLre=145; vLim=146; vLdt=147
    e(f'''
    buffer_load_dword v{vE}, off, {srd(sWS)}, 0 sc1
    s_lshl_b32 s{sT}, s{sPJ}, 6
    v_lshl_add_u32 v{t2}, v{vrho}, 1, s{sT}
    global_load_ushort v{vLre}, v{t2}, s[6:7]
    global_load_ushort v{vLim}, v{t2}, s[8:9]
    global_load_ushort v{vLdt}, v{t2}, s[18:19]
    ''')
    e(f'''
    s_lshr_b32 s{sT}, s{sPJ}, 2
    s_mul_i32 s{sT}, s{sT}, 7
    s_and_b32 s{sT2}, s{sPJ}, 3
    s_add_u32 s{sT}, s{sT}, s{sT2}
    s_lshl_b32 s{sW1A}, s{sT}, 7
    s_cmp_eq_u32 s{sT2}, 3
    s_cselect_b32 s{sCNT}, 0, 512
    s_add_u32 s{sW1B}, s{sW1A}, s{sCNT}
    v_lshl_add_u32 v{t2}, v{vrho}, 1, s{sW1A}
    v_lshl_add_u32 v{t3}, v{vrho}, 1, s{sW1B}
    global_load_ushort v{vBI}, v{t2}, s[26:27]
    global_load_ushort v{vBI+2}, v{t2}, s[26:27] offset:64
    global_load_ushort v{vBI+4}, v{t3}, s[26:27]
    global_load_ushort v{vBI+6}, v{t3}, s[26:27] offset:64
    ''')
    def dma_cell(slot, vbase, s, soff_code, tok, need=()):
        L = mk(f's_add_u32 m0, s{sW4K}, {slot*SLOT}', need=need) + mk(soff_code)
        for i in range(4):
            L += mk(f'buffer_load_dwordx4 v{vbase+i}, {srd(s)}, s{sT} offen offset:{1024*i} lds', tok=tok if i==3 else None)
        return L
    for c in range(8):
        code = f's_add_u32 s{sT}, s{sA1}, s{sKX+(c>>1)}' if c%2==0 else f's_add_u32 s{sT}, s{sT}, 128'
        P.extend(dma_cell(XSLOT[c], vXD, sX, code, f'x{c}'))
    e(f'''
    s_mov_b32 s{sW1}, s24
    s_mov_b32 s{sW1+1}, s25
    s_mov_b32 s{sW1+2}, {512*3584}
    s_mov_b32 s{sW1+3}, 0x20000
    ''')
    e(f'''
    s_mul_i32 s{sSH}, s{sA0}, {176*1024}
    s_add_u32 s{sSH}, s{sSH}, {A_BASE}
    s_lshl_b32 s{sT}, s{sW1A}, 5
    s_add_u32 s{sSA}, s{sSH}, s{sT}
    s_add_u32 s{sSB}, s{sSA}, {4*4096}
    s_lshl_b32 s{sT}, s{sPJ}, 12
    s_add_u32 s{sSH}, s{sSH}, s{sT}
    s_add_u32 s{sSH}, s{sSH}, {112*1024}
    s_mul_i32 s{sT}, s{sW}, {32*3584}
    s_add_u32 s{sW1A}, s{sW1A}, s{sT}
    s_add_u32 s{sW1B}, s{sW1B}, s{sT}
    s_cmp_eq_u32 s{sT2}, 3
    s_cselect_b32 s{sW1B}, {OOB}, s{sW1B}
    s_cselect_b32 s{sSB}, {OOB}, s{sSB}
    ''')
    e(f'''
    v_bfe_u32 v{t2}, v{vl}, 2, 2
    v_lshl_add_u32 v{t2}, v{vh}, 2, v{t2}
    v_bfe_u32 v{t3}, v{vl}, 4, 1
    v_lshlrev_b32 v{t3}, 6, v{t3}
    v_and_b32 v{vW1}, 3, v{vl}
    v_lshl_add_u32 v{t3}, v{vW1}, 4, v{t3}
    v_mul_u32_u24 v{vW1}, 3584, v{t2}
    v_add_u32 v{vW1}, v{vW1}, v{t3}
    v_add_u32 v{vW1+1}, {1*(8*3584-1024)}, v{vW1}
    v_add_u32 v{vW1+2}, {2*(8*3584-1024)}, v{vW1}
    v_add_u32 v{vW1+3}, {3*(8*3584-1024)}, v{vW1}
    ''')
    def Wdma(s, need=()):
        u,c=divmod(s,4); slot=WRING[s%5]
        if u==1: return dma_cell(slot, vBC, sB, f's_add_u32 s{sT}, s{sBB}, s{sKX+c}', f'W{s}', need)
        return dma_cell(slot, vW1, sW1, f's_add_u32 s{sT}, s{sW1A if u==0 else sW1B}, s{sKW+c}', f'W{s}', need)
    P.extend(Wdma(0)); P.extend(Wdma(1))
    e(f'''
    s_and_b32 s{sT2}, s{sW}, 1
    s_lshl_b32 s{sT}, s{sT2}, 6
    v_xor_b32 v{t3}, s{sT}, v{t3}
    v_lshl_add_u32 v{vW2}, v{t2}, 10, v{t3}
    v_add_u32 v{vW2+1}, {1*7168}, v{vW2}
    v_add_u32 v{vW2+2}, {2*7168}, v{vW2}
    v_add_u32 v{vW2+3}, {3*7168}, v{vW2}
    v_lshrrev_b32 v{t2}, 3, v{vl}
    v_lshl_add_u32 v{vBC}, v{t2}, 10, v{t0}
    v_lshl_add_u32 v{vBC+1}, v{t2}, 10, v{t1}
    v_add_u32 v{vBC+2}, {2*7168}, v{vBC}
    v_add_u32 v{vBC+3}, {3*7168}, v{vBC+1}
    v_add_u32 v{vBC+1}, 7168, v{vBC+1}
    s_cmp_lt_u32 s{sW}, 2
    s_cselect_b32 s{sB}, s10, s12
    s_cselect_b32 s{sB+1}, s11, s13
    s_mov_b32 s{sB+2}, {512*1024}
    s_mov_b32 s{sB+3}, 0x20000
    s_mov_b32 s{sW2}, s28
    s_mov_b32 s{sW2+1}, s29
    s_mov_b32 s{sW2+2}, {1792*1024}
    s_mov_b32 s{sW2+3}, 0x20000
    s_mov_b32 s{sCR}, s14
    s_mov_b32 s{sCR+1}, s15
    s_mov_b32 s{sCR+2}, {512*1024}
    s_mov_b32 s{sCR+3}, 0x20000
    s_mov_b32 s{sCI}, s16
    s_mov_b32 s{sCI+1}, s17
    s_mov_b32 s{sCI+2}, {512*1024}
    s_mov_b32 s{sCI+3}, 0x20000
    s_mov_b32 s{sOUT}, s30
    s_mov_b32 s{sOUT+1}, s31
    s_mov_b32 s{sOUT+2}, {2048*2048}
    s_mov_b32 s{sOUT+3}, 0x20000
    s_lshl_b32 s{sT}, s{sPJ}, 13
    s_add_u32 s{sT}, s{sT}, {AGG_BASE}
    s_add_u32 s{sAG}, s34, s{sT}
    s_addc_u32 s{sAG+1}, s35, 0
    s_mov_b32 s{sAG+2}, 8192
    s_mov_b32 s{sAG+3}, 0x20000
    s_lshl_b32 s{sBB}, s{sPJ}, 15
    s_lshl_b32 s{sT}, s{sT2}, 7
    s_add_u32 s{sBB}, s{sBB}, s{sT}
    s_mul_i32 s{sPB}, s{sW}, {448*1024}
    s_lshl_b32 s{sT}, s{sCB}, 7
    s_add_u32 s{sPB}, s{sPB}, s{sT}
    s_lshl_b32 s{sCB0}, s{sCB}, 16
    s_lshl_b32 s{sT}, s{sW}, 8
    s_add_u32 s{sCB0}, s{sCB0}, s{sT}
    s_lshl_b32 s{sT}, s{sT2}, 15
    s_add_u32 s{sCB0}, s{sCB0}, s{sT}
    s_xor_b32 s{sCB1}, s{sCB0}, 0x8000
    s_lshl_b32 s{sFL}, s{sA0}, 4
    s_add_u32 s{sFL}, s{sFL}, s{sPJ}
    s_lshl_b32 s{sFL}, s{sFL}, 7
    s_add_u32 s{sFL}, s{sFL}, {FLAG_BASE}
    ''')
    vD=T+14
    e(f'''
    s_lshl_b32 s{sT}, s{sCB}, 7
    s_lshl_b32 s{sCNT}, s{sT2}, 6
    s_add_u32 s{sT}, s{sT}, s{sCNT}
    v_lshl_add_u32 v{t2}, v{vrho}, 1, s{sT}
    global_load_ushort v{vD}, v{t2}, s[20:21]
    ''')
    if o['touch']:
        e(f'''
        s_lshl_b32 s{sT}, s2, 2
        s_add_u32 s{sT}, s{sT}, s{sW}
        s_mul_i32 s{sCNT}, s{sT}, {14*128}
        v_min_u32 v{t2}, 13, v{vl}
        v_lshlrev_b32 v{t2}, 7, v{t2}
        v_and_b32 v{t3}, 3, v{vl}
        v_lshlrev_b32 v{t3}, 7, v{t3}
        s_lshl_b32 s{sT}, s{sT}, 9
        v_add_u32 v{t3}, s{sT}, v{t3}
        s_mov_b64 exec, 15
        global_load_dword v{T+13}, v{t3}, s[10:11]
        global_load_dword v{T+12}, v{t3}, s[12:13]
        s_mov_b64 exec, 0x3fff
        buffer_load_dword v{T+11}, v{t2}, {srd(sW2)}, s{sCNT} offen
        buffer_load_dword v{T+10}, v{t2}, {srd(sW1)}, s{sCNT} offen
        s_mov_b64 exec, 15
        global_load_dword v{T+9}, v{t3}, s[14:15]
        global_load_dword v{T+8}, v{t3}, s[16:17]
        s_mov_b64 exec, -1
        ''')
    e(f'''
    v_bfe_u32 v{t2}, v{vrho}, 1, 3
    v_xor_b32 v{t2}, v{t2}, v{vh}
    v_lshlrev_b32 v{t2}, 4, v{t2}
    v_lshl_add_u32 v{t2}, v{vrho}, 7, v{t2}
    v_add_u32 v{vAB}, s{sW4K}, v{t2}
    v_xor_b32 v{vAB+1}, 32, v{vAB}
    v_xor_b32 v{vAB+2}, 64, v{vAB}
    v_xor_b32 v{vAB+3}, 0x60, v{vAB}
    v_bfe_u32 v{t2}, v{vl}, 2, 2
    v_lshlrev_b32 v{t2}, 6, v{t2}
    v_bfe_u32 v{t3}, v{vl}, 4, 1
    v_lshl_add_u32 v{t2}, v{t3}, 5, v{t2}
    v_and_b32 v{t3}, 3, v{vl}
    v_lshl_add_u32 v{t2}, v{t3}, 3, v{t2}
    v_lshl_add_u32 v{vT1}, v{vh}, 10, v{t2}
    v_add_u32 v{vT1+1}, 0x10000, v{vT1}
    v_lshl_add_u32 v{vT2}, v{vh}, 9, v{t2}
    s_add_u32 s{sT}, s{sW4K}, {PRING[0]*SLOT}
    v_add_u32 v{vT2}, s{sT}, v{vT2}
    ''')
    abwin=[0]
    def ab_window(addr):
        L=[]
        if not (0 <= addr-abwin[0] <= 65536-4096):
            nw = min(addr//SLOT*SLOT, 10*SLOT-65536) if addr>abwin[0] else max(0, addr//SLOT*SLOT+SLOT-65536)
            d = nw-abwin[0]
            for k in range(4): L+=mk(f'v_add_u32 v{vAB+k}, {d & 0xffffffff}, v{vAB+k}')
            abwin[0]=nw
        return L, addr-abwin[0]
    vseg=137
    e(f'''s_lshl_b32 s{sT}, s{sW}, 1
    v_add_u32 v{vseg}, s{sT}, v{vh}''')
    for s in range(1,8): e(f'v_cmp_eq_u32 s[{sMASK+2*(s-1)}:{sMASK+2*(s-1)+1}], {s}, v{vseg}')
    a_,th=148,149
    e(f'''
    v_readfirstlane_b32 s{sTAG}, v{vE}
    v_lshlrev_b32 v{vLre}, 16, v{vLre}
    v_lshlrev_b32 v{vLim}, 16, v{vLim}
    v_lshlrev_b32 v{vLdt}, 16, v{vLdt}
    v_mul_f32 v{vLdt}, {f2u(LOG2E)}, v{vLdt}
    v_exp_f32 v{vLdt}, v{vLdt}
    s_add_u32 s{sTAG}, s{sTAG}, {KTAG}
    v_cvt_pk_bf16_f32 v{vLdt}, v{vLdt}, v{vLdt}
    v_and_b32 v{vLdt}, 0xffff0000, v{vLdt}
    v_mul_f32 v{a_}, v{vLdt}, v{vLre}
    v_mul_f32 v{th}, v{vLdt}, v{vLim}
    v_mul_f32 v{a_}, {f2u(LOG2E)}, v{a_}
    v_mul_f32 v{th}, {f2u(1/(2*math.pi))}, v{th}
    v_cvt_f32_u32 v{vseg}, v{vseg}
    v_mul_f32 v{vseg}, {f2u(16.0)}, v{vseg}
    ''')
    def cpow(dst, n):
        ns = f'v{vseg}' if n=='seg' else str(f2u(float(n)))
        e(f'''
        v_mul_f32 v{t0}, {ns}, v{a_}
        v_mul_f32 v{t1}, {ns}, v{th}
        v_exp_f32 v{t0}, v{t0}
        v_fract_f32 v{t1}, v{t1}
        v_cos_f32 v{t2}, v{t1}
        v_sin_f32 v{t3}, v{t1}
        v_mul_f32 v{dst}, v{t0}, v{t2}
        v_mul_f32 v{dst+1}, v{t0}, v{t3}
        ''')
    cpow(vLAM,1); cpow(vL16P,16); cpow(vL128,128); cpow(vL1K,1024); cpow(vLSEG,'seg')
    e(f'''
    v_mul_f32 v{t0}, v{vLre}, v{vLre}
    v_fmac_f32 v{t0}, v{vLim}, v{vLim}
    v_rcp_f32 v{t0}, v{t0}
    v_add_f32 v{t1}, -1.0, v{vLAM}
    v_mul_f32 v{t2}, v{t1}, v{vLre}
    v_fmac_f32 v{t2}, v{vLAM+1}, v{vLim}
    v_mul_f32 v{t3}, v{vLAM+1}, v{vLre}
    v_fma_f32 v{t3}, -v{t1}, v{vLim}, v{t3}
    v_mul_f32 v{t0}, {f2u(2*LN2*LN2)}, v{t0}
    v_mul_f32 v{vCO}, v{t2}, v{t0}
    v_mul_f32 v{vCO+1}, v{t3}, v{t0}
    ''')
    khi=bf16(LOG2E); klo=bf16(LOG2E-bf2f(khi))
    for k in (0,2,4,6): e(f'v_lshl_or_b32 v{vBI+k}, v{vBI+k}, 16, v{vBI+k}')
    for k in (1,3,5,7,8,9): e(f'v_mov_b32 v{vBI+k}, 0')
    e(f'''
    v_cmp_eq_u32 vcc, 0, v{vh}
    v_mov_b32 v{vK+1}, 0
    v_mov_b32 v{vK+2}, 0
    v_mov_b32 v{vK+3}, 0
    v_mov_b32 v{vK}, {khi | (klo<<16)}
    v_cndmask_b32 v{vK}, 0, v{vK}, vcc
    ''')
    P.extend(stamp('pro'))
    def Pdma(k, slot, need=()):
        if k<14: return dma_cell(slot, vW2, sW2, f's_add_u32 s{sT}, s{sPB}, {k*32768}', f'P{k}', need)
        m=k-14; part,sp,z = m>>2, (m>>1)&1, m&1
        return dma_cell(slot, vBC, sCI if part else sCR, f's_add_u32 s{sT}, s{sCB1 if z else sCB0}, {sp*128}', f'P{k}', need)
    pslot={}
    def Pdrain(k):
        L=[]; base=(pslot[k]-PRING[0])*SLOT
        for f in range(2):
            for z in range(2):
                for j in range(2):
                    d=16*k+8*f+4*z+2*j
                    L+=mk(f'ds_read_b64_tr_b16 a[{d}:{d+1}], v{vT2} offset:{base+f*2048+j*1024+z*256}',
                          tok=f'Pd{k}' if (f,z,j)==(1,1,1) else None, need=[f'P{k}'] if (f,z,j)==(0,0,0) else ())
        return L
    sS,sQ=150,152; vONE=154
    e(f'''v_mov_b32 v{sS}, 0
    v_mov_b32 v{sS+1}, 0
    v_mov_b32 v{sQ}, 0
    v_mov_b32 v{sQ+1}, 0
    v_mov_b32 v{vONE}, 0x3f803f80''')
    after_x=[('P',0),('P',1),('W',2),('P',2),('W',3),('P',3),('W',4),None]
    for c in range(8):
        L,imm=ab_window(XSLOT[c]*SLOT); P.extend(L)
        for kk in range(4):
            e(f'ds_read_b128 {vr(X+16*c+4*kk)}, v{vAB+kk} offset:{imm}', tok=f'xd{c}' if kk==3 else None, need=[f'x{c}'] if kk==0 else ())
        nx=after_x[c]
        if c==0: P.extend(stamp('x0'))
        if nx:
            if nx[0]=='P': pslot[nx[1]]=XSLOT[c]; P.extend(Pdma(nx[1], XSLOT[c], [f'xd{c}']))
            else:
                assert WRING[nx[1]%5]==XSLOT[c]; P.extend(Wdma(nx[1], [f'xd{c}']))
        for d in range(16):
            r=X+16*c+d
            e(f'v_dot2_f32_bf16 v{sS+(d&1)}, v{r}, v{vONE}, v{sS+(d&1)}')
            e(f'v_dot2_f32_bf16 v{sQ+(d&1)}, v{r}, v{r}, v{sQ+(d&1)}')
    P.extend(stamp('x7'))
    vM,vR=156,157; vC,vKL,vKH=158,159,155
    e(f'''
    v_add_f32 v{sS}, v{sS}, v{sS+1}
    v_add_f32 v{sQ}, v{sQ}, v{sQ+1}
    v_mov_b32 v{sS+1}, v{sS}
    v_mov_b32 v{sQ+1}, v{sQ}
    v_permlane32_swap_b32 v{sS}, v{sS+1}
    v_permlane32_swap_b32 v{sQ}, v{sQ+1}
    v_add_f32 v{sS}, v{sS}, v{sS+1}
    v_add_f32 v{sQ}, v{sQ}, v{sQ+1}
    v_mul_f32 v{vM}, {f2u(1/512)}, v{sS}
    v_mul_f32 v{sQ}, {f2u(1/512)}, v{sQ}
    v_fma_f32 v{sQ}, -v{vM}, v{vM}, v{sQ}
    v_max_f32 v{sQ}, 0, v{sQ}
    v_add_f32 v{sQ}, {f2u(1e-5)}, v{sQ}
    v_rsq_f32 v{vR}, v{sQ}
    v_mul_f32 v{vKL}, {f2u(LOG2E)}, v{vR}
    v_cvt_pk_bf16_f32 v{vKL}, v{vKL}, v{vKL}
    v_and_b32 v{vKH}, 0xffff0000, v{vKL}
    v_lshrrev_b32 v{vKL}, 16, v{vKL}
    v_mul_f32 v{vC}, v{vM}, v{vKH}
    v_sub_f32 v{vC}, 0, v{vC}
    ''')
    e(f'''
    v_bfe_u32 v{t0}, v{vrho}, 2, 1
    v_lshrrev_b32 v{t1}, 3, v{vrho}
    v_and_b32 v{t2}, 3, v{vrho}
    v_lshl_add_u32 v{t2}, v{t0}, 4, v{t2}
    v_lshl_add_u32 v{t2}, v{t1}, 2, v{t2}
    v_lshlrev_b32 v{t2}, 3, v{t2}
    s_lshl_b32 s{sT}, s{sPJ}, 14
    s_lshl_b32 s{sT2}, s{sA0}, 8
    s_add_u32 s{sT}, s{sT}, s{sT2}
    s_add_u32 s{sT}, s{sT}, {STAT_BASE}
    buffer_store_dwordx2 v[{vM}:{vM+1}], v{t2}, {srd(sWS)}, s{sT} offen sc1
    ''')
    nextP=[4]
    def Pcycle(k):
        L=Pdrain(k); n=nextP[0]; nextP[0]+=1; pslot[n]=pslot[k]
        return L, Pdma(n, pslot[k], [f'Pd{k}'])
    NT=8
    ins_at={40:('d',0),48:('r',0),72:('d',1),80:('r',1),112:('d',2),120:('r',2)}
    pend={}
    for d in range(128+2):
        if d in ins_at:
            ty,k=ins_at[d]
            if ty=='d': a,b=Pcycle(k); P.extend(a); pend[k]=b
            else: P.extend(pend[k])
        if d<128:
            tt=T+2*(d%4)
            e(f'v_dot2_f32_bf16 v{tt}, v{X+d}, v{vKL}, v{vC}\nv_dot2_f32_bf16 v{tt+1}, v{X+d}, v{vKH}, v{vC}')
        if d>=2:
            tt=T+2*((d-2)%4)
            e(f'v_cvt_pk_bf16_f32 v{X+d-2}, v{tt}, v{tt+1}')
    for k in range(4):
        e(f's_add_u32 s{sT}, s{sW4K}, {abwin[0]}' if k==0 else '')
        e(f'v_subrev_u32 v{vAB+k}, s{sT}, v{vAB+k}')
    abwin[0]=0
    P.extend(stamp('norm'))
    LEAD=o['LEAD']
    def reads(g):
        s,j=divmod(g,16); u=s//4; slot=WRING[s%5]; b=FB+4*(g%8)
        kk,c=j>>1,j&1
        if u==1:
            cell=slot*SLOT+(2*c+(kk>>2))*4096
            assert cell+4096<=65536
            return mk(f'ds_read_b128 {ar(b)}, v{vAB+(kk&3)} offset:{cell}')
        ad=slot*SLOT+(kk>>1)*4096+(kk&1)*2048+c*256
        wv=ad//65536; ad-=wv*65536
        return mk(f'ds_read_b64_tr_b16 {ar(b,2)}, v{vT1+wv} offset:{ad}\nds_read_b64_tr_b16 {ar(b+2,2)}, v{vT1+wv} offset:{ad+512}')
    def mfma1(g):
        s,j=divmod(g,16); u=s//4; b=FB+4*(g%8); kk,c=j>>1,j&1
        xf=X+4*((s%4)*8+kk)
        if u==1:
            d=vr(ACC1+16*c,16); cin = '0' if (s%4==0 and kk==0) else d
            return mk(f'v_mfma_f32_32x32x16_bf16 {d}, {vr(xf)}, {ar(b)}, {cin}')
        d=vr(ACC0+16*c,16)
        return mk(f'v_mfma_f32_32x32x16_bf16 {d}, {ar(b)}, {vr(xf)}, {d}')
    def biasm(u):
        L=[]
        for c in range(2):
            L+=mk(f'v_mfma_f32_32x32x16_bf16 {vr(ACC0+16*c,16)}, {vr(vBI+2*(u+c))}, {vr(vK)}, 0')
        return L
    def mish(sbase, tokp):
        L=[]
        for fr in range(4):
            b=ACC0+8*fr
            for i in range(4):
                a0,a1=b+2*i,b+2*i+1; u0,u1=T+2*(i&1),T+2*(i&1)+1
                L+=mk(f'''
                v_exp_f32 v{u0}, v{a0}
                v_exp_f32 v{u1}, v{a1}
                v_add_f32 v{u0}, 1.0, v{u0}
                v_add_f32 v{u1}, 1.0, v{u1}
                v_fma_f32 v{u0}, v{u0}, v{u0}, 1.0 div:2
                v_fma_f32 v{u1}, v{u1}, v{u1}, 1.0 div:2
                v_rcp_f32 v{u0}, v{u0}
                v_rcp_f32 v{u1}, v{u1}
                v_fma_f32 v{u0}, -v{a0}, v{u0}, v{a0}
                v_fma_f32 v{u1}, -v{a1}, v{u1}, v{a1}
                v_cvt_pk_bf16_f32 v{b+i}, v{u0}, v{u1}
                ''')
            L+=mk(f'buffer_store_dwordx4 {vr(b)}, v{vL16}, {srd(sWS)}, s{sbase} offen offset:{1024*fr} sc1', tok=f'{tokp}{fr}')
        return L
    def cmadd(dr,di,mr,mi,sr,si,ar_,ai_):
        return mk(f'''v_fma_f32 v{dr}, v{mr}, v{sr}, v{ar_}
        v_fma_f32 v{di}, v{mr}, v{si}, v{ai_}
        v_fma_f32 v{dr}, -v{mi}, v{si}, v{dr}
        v_fmac_f32 v{di}, v{mi}, v{sr}''')
    RE,IM=ACC1,ACC1+16
    def scan1a():
        L=[]; pr,pi_=RE,IM
        for t in range(1,16):
            d=T+2*(t&1); L+=cmadd(d,d+1,vLAM,vLAM+1,pr,pi_,RE+t,IM+t); pr,pi_=d,d+1
        L+=mk(f'''v_mul_f32 v{T+4}, v{vCO}, v{pr}
        v_mul_f32 v{T+5}, v{vCO}, v{pi_}
        v_fma_f32 v{T+4}, -v{vCO+1}, v{pi_}, v{T+4}
        v_fmac_f32 v{T+5}, v{vCO+1}, v{pr}
        v_and_b32 v{T+6}, 0x1f0, v{vL16}
        v_add_u32 v{T+6}, {SCR*SLOT}, v{T+6}
        v_lshrrev_b32 v{T+7}, 6, v{vL16}
        v_and_b32 v{T+7}, 8, v{T+7}
        s_lshl_b32 s{sT2}, s{sW}, 9
        v_add3_u32 v{T+7}, v{T+7}, v{T+6}, s{sT2}''')
        L+=mk(f'ds_write_b64 v{T+7}, v[{T+4}:{T+5}]', tok='xw')
        return L
    EX=vBI-2
    EX=226
    def scan1b():
        L=[]
        for w in range(4): L+=mk(f'ds_read_b128 {vr(EX+4*w)}, v{T+6} offset:{512*w}', tok='xr' if w==3 else None)
        L+=mk(f'v_mov_b32 v{vPRE}, 0\nv_mov_b32 v{vPRE+1}, 0')
        pr,pi_=EX,EX+1
        for s in range(1,8):
            m=f's[{sMASK+2*(s-1)}:{sMASK+2*(s-1)+1}]'
            L+=mk(f'v_cndmask_b32 v{vPRE}, v{vPRE}, v{pr}, {m}\nv_cndmask_b32 v{vPRE+1}, v{vPRE+1}, v{pi_}, {m}')
            if s<7: d=(T+2+2*(s&1),T+3+2*(s&1))
            else: d=(T+8,T+10)
            L+=cmadd(d[0],d[1],vL16P,vL16P+1,pr,pi_,EX+2*s,EX+2*s+1); pr,pi_=d
        L+=mk(f'''v_mov_b32 v{T+9}, s{sTAG}
        v_mov_b32 v{T+11}, s{sTAG}
        v_and_b32 v{T+7}, 0x200, v{vL16}
        v_lshl_add_u32 v{T+7}, v{T+7}, 8, v{vL16}
        s_sub_u32 s{sT2}, 15, s{sPI}
        s_lshl_b32 s{sT2}, s{sT2}, 9
        s_cmp_eq_u32 s{sW}, 0
        s_cselect_b32 s{sT2}, s{sT2}, {OOB}
        buffer_store_dwordx4 {vr(T+8)}, v{T+7}, {srd(sAG)}, s{sT2} offen sc1''')
        return L
    def coefmul():
        L=[]
        for t in range(16):
            L+=mk(f'''v_mul_f32 v{T+2}, v{vCO+1}, v{IM+t}
            v_mul_f32 v{IM+t}, v{vCO}, v{IM+t}
            v_fmac_f32 v{IM+t}, v{vCO+1}, v{RE+t}
            v_fma_f32 v{RE+t}, v{vCO}, v{RE+t}, -v{T+2}''')
        return L
    def flag(stage, need):
        return mk(f's_add_u32 s{sT2}, s{sTAG}, {stage}\nv_mov_b32 v{T+12}, s{sT2}') + \
               mk(f's_mov_b64 exec, 1', need=need) + mk(f'buffer_store_dword v{T+12}, off, {srd(sWS)}, s{sFL} sc1\ns_mov_b64 exec, -1')
    fill={}
    cost=lambda i: 2 if i.kind=='trans' else 1
    def spread(L,g0,g1):
        tot=sum(cost(i) for i in L); acc=0; glue=False; g=g0
        for i in L:
            if not glue: g=g0+int(acc*(g1-g0)/tot)
            fill.setdefault(g,[]).append(i); acc+=cost(i); glue=(i.kind=='salu')
    def atomic(L,g): fill.setdefault(g,[]).extend(L)
    pc=3
    for s in range(12):
        g=16*s
        if pc<=13:
            a,b=Pcycle(pc); pc+=1
            spread(a,g+1,g+4); atomic(b,g+7)
    spread(mish(sSA,'sa'),66,126)
    spread(scan1a(),130,16*10-LEAD-1)
    barneed={10:['xw'],11:['xr']}
    spread(scan1b(),16*10-LEAD+1,16*11-LEAD-1)
    spread(coefmul(),16*11-LEAD+1,192)
    atomic(flag(1,['sa3']),16*10+4)
    P.extend(biasm(0))
    for g in range(192+LEAD):
        if g<192:
            s,j=divmod(g,16)
            if j==0:
                P.extend(mk('s_barrier', need=[f'W{s}']+barneed.get(s,[])))
                if s in (4,8): P.extend(stamp(f'st{s}'))
            P.extend(reads(g))
            if j==1 and s>=2:
                if s+3<12: P.extend(Wdma(s+3))
                else:
                    n=nextP[0]; nextP[0]+=1; pslot[n]=WRING[(s-2)%5]; P.extend(Pdma(n,pslot[n]))
        if g>=LEAD:
            if g-LEAD==128: P.extend(biasm(2))
            P.extend(mfma1(g-LEAD)); P.extend(fill.get(g-LEAD,[]))
    assert nextP[0]==21
    P.extend(stamp('mf1'))
    vFO=T+13; vPL=T+15
    def poll_issue(k):
        return mk(f'buffer_load_dword v{vPL}, v{vFO}, {srd(sWS)}, 0 offen sc1')
    def poll_check(k):
        chk=f'''s_add_u32 s{sT2}, s{sTAG}, {k}
        v_subrev_u32 v{vPL}, s{sT2}, v{vPL}
        v_cmp_lt_u32 vcc, {3-k}, v{vPL}'''
        slow.append(f'''L_sp{k}:
        s_mov_b32 s{sCNT}, 0
        L_spl{k}:
        buffer_load_dword v{vPL}, v{vFO}, {srd(sWS)}, 0 offen sc1
        s_add_u32 s{sCNT}, s{sCNT}, 1
        s_waitcnt vmcnt(0)
        v_subrev_u32 v{vPL}, s{sT2}, v{vPL}
        v_cmp_lt_u32 vcc, {3-k}, v{vPL}
        s_cmp_gt_u32 s{sCNT}, 0x40000
        s_cbranch_scc1 L_pr{k}
        s_cbranch_vccnz L_spl{k}
        s_branch L_pr{k}''')
        return mk(chk+f'\ns_cbranch_vccnz L_sp{k}\nL_pr{k}:')
    for k in range(4): e(f'v_add_u32 v{vAB+k}, s{sW4K}, v{vAB+k}')
    cdst={0:FB,1:FB+16}
    for m in range(2,8): cdst[m]=16*(m-2)
    def Cdrain(m):
        L,imm=ab_window(pslot[14+m]*SLOT)
        for kk in range(4):
            L+=mk(f'ds_read_b128 {ar(cdst[m]+4*kk)}, v{vAB+kk} offset:{imm}', tok=f'Pd{14+m}' if kk==3 else None, need=[f'P{14+m}'] if kk==0 else ())
        return L
    e(f'''
    v_bfe_u32 v{T+2}, v{vL16}, 6, 1
    v_bfe_u32 v{T+3}, v{vL16}, 4, 2
    v_lshl_add_u32 v{T+2}, v{T+2}, 4, v{T+3}
    s_lshl_b32 s{sT}, s{sRB}, 5
    s_lshl_b32 s{sT2}, s{sW}, 2
    s_add_u32 s{sT}, s{sT}, s{sT2}
    s_lshl_b32 s{sT}, s{sT}, 7
    s_add_u32 s{sT}, s{sT}, {FLAG_BASE}
    v_lshl_add_u32 v{vFO}, v{T+2}, 7, s{sT}
    ''')
    P.extend(poll_issue(1))
    P.extend(Cdrain(0))
    pslot[21]=pslot[14]; P.extend(Pdma(21,pslot[21],['Pd14']))
    e(f'''
    s_lshr_b32 s{sT}, s{sW}, 1
    s_lshl_b32 s{sT2}, s{sRB}, 1
    s_add_u32 s{sKX}, s{sT2}, s{sT}
    s_xor_b32 s{sT2}, s{sKX}, 1
    s_mul_i32 s{sA0}, s{sKX}, {176*1024}
    s_mul_i32 s{sA1}, s{sT2}, {176*1024}
    s_mul_i32 s{sT}, s{sW}, {28*1024}
    s_add_u32 s{sT}, s{sT}, {A_BASE}
    s_add_u32 s{sA0}, s{sA0}, s{sT}
    s_add_u32 s{sA1}, s{sA1}, s{sT}
    s_mul_i32 s{sKX+1}, s{sW}, {12*1024}
    s_sub_u32 s{sKX+1}, {(112-24)*1024}, s{sKX+1}
    ''')
    AR=64; NA=16
    def Aload(n):
        ks,a=divmod(n,2); L=[]
        s=sA0+a
        if ks%4==0 and ks>0:
            L+=mk(f's_add_u32 s{s}, s{s}, '+(f's{sKX+1}' if ks==28 else '4096'))
        L+=mk(f'buffer_load_dwordx4 {vr(AR+4*(n%NA))}, v{vL16}, {srd(sWS)}, s{s} offen offset:{1024*(ks%4)} sc1')
        return L
    LB=0
    lbl=''.join(f'buffer_load_dwordx4 {vr(LB+4*n)}, v{T+6}, {srd(sAG)}, 0 offen offset:{512*n} sc1\n' for n in range(8))
    def lb_issue():
        return mk(f'''v_and_b32 v{T+6}, 0x1f0, v{vL16}
        v_and_b32 v{T+7}, 0x200, v{vL16}
        v_lshl_add_u32 v{T+6}, v{T+7}, 3, v{T+6}
        s_sub_u32 s{sT2}, 16, s{sPI}
        s_lshl_b32 s{sT2}, s{sT2}, 9
        v_add_u32 v{T+6}, s{sT2}, v{T+6}
        '''+lbl)
    def lb_sum():
        s=f'v_add_u32 v{T+8}, v{LB+1}, v{LB+3}\n'
        for n in range(1,8): s+=f'v_add3_u32 v{T+8}, v{LB+4*n+1}, v{LB+4*n+3}, v{T+8}\n'
        return s+f'v_cmp_ne_u32 vcc, v{T+8}, v{T+9}\n'
    def lb_check():
        L=mk(f'''v_lshrrev_b32 v{T+9}, 6, v{T+7}
        v_sub_u32 v{T+9}, s{sPI}, v{T+9}
        v_med3_i32 v{T+9}, v{T+9}, 0, 8
        s_lshl_b32 s{sT2}, s{sTAG}, 1
        v_mul_lo_u32 v{T+9}, v{T+9}, s{sT2}
        '''+lb_sum()+'s_cbranch_vccnz L_slb\nL_rlb:')
        slow.append(f'''L_slb:
        s_mov_b32 s{sCNT}, 0
        L_slbl:
        {lbl}
        s_add_u32 s{sCNT}, s{sCNT}, 1
        s_waitcnt vmcnt(0)
        {lb_sum()}
        s_cmp_gt_u32 s{sCNT}, 0x40000
        s_cbranch_scc1 L_rlb
        s_cbranch_vccnz L_slbl
        s_branch L_rlb''')
        return L
    mB=mish(sSB,'sb')
    h2=len(mB)//2
    P.extend(mB[:h2]); P.extend(lb_issue()); P.extend(mB[h2:])
    P.extend(stamp('mishB'))
    P.extend(poll_check(1))
    for n in range(NA): P.extend(Aload(n))
    P.extend(lb_check())
    pr,pi_=LB+28,LB+30
    for n in range(6,-1,-1):
        d=T+2*(n&1); P.extend(cmadd(d,d+1,vL128,vL128+1,pr,pi_,LB+4*n,LB+4*n+2)); pr,pi_=d,d+1
    e(f'''v_mov_b32 v{T+2}, v{pr}
    v_mov_b32 v{T+3}, v{pi_}
    v_permlane32_swap_b32 v{pr}, v{T+2}
    v_permlane32_swap_b32 v{pi_}, v{T+3}''')
    assert pr==T
    P.extend(cmadd(T+4,T+5,vL1K,vL1K+1,T+2,T+3,T,T+1))
    P.extend(cmadd(T,T+1,vLSEG,vLSEG+1,T+4,T+5,vPRE,vPRE+1))
    P.extend(flag(2,['sb3']))
    pr,pi_=T,T+1
    for t in range(16):
        e(f'''v_fmac_f32 v{RE+t}, v{vLAM}, v{pr}
        v_fmac_f32 v{IM+t}, v{vLAM}, v{pi_}
        v_fma_f32 v{RE+t}, -v{vLAM+1}, v{pi_}, v{RE+t}
        v_fmac_f32 v{IM+t}, v{vLAM+1}, v{pr}''')
        pr,pi_=RE+t,IM+t
    for i in range(8):
        e(f'v_cvt_pk_bf16_f32 v{RE+i}, v{RE+2*i}, v{RE+2*i+1}\nv_cvt_pk_bf16_f32 v{IM+i}, -v{IM+2*i}, -v{IM+2*i+1}')
    e(f'''
    v_and_b32 v{T}, 0x1f0, v{vL16}
    v_lshrrev_b32 v{T+1}, 4, v{T+7}
    v_lshl_add_u32 v{T}, v{T}, 2, v{T+1}
    s_add_u32 s{sT2}, s{sW4K}, {SCR*SLOT}
    v_add_u32 v{T}, s{sT2}, v{T}
    ds_write_b128 v{T}, {vr(RE)}
    ds_write_b128 v{T}, {vr(RE+4)} offset:16
    ds_write_b128 v{T}, {vr(IM)} offset:2048
    ds_write_b128 v{T}, {vr(IM+4)} offset:2064
    v_and_b32 v{T+1}, 0x2c0, v{vL16}
    v_bfe_u32 v{T+2}, v{vL16}, 4, 1
    v_lshl_add_u32 v{T+1}, v{T+2}, 5, v{T+1}
    v_bfe_u32 v{T+2}, v{vL16}, 8, 1
    v_lshl_add_u32 v{T+1}, v{T+2}, 4, v{T+1}
    v_bfe_u32 v{T+2}, v{vL16}, 5, 1
    v_lshl_add_u32 v{T+1}, v{T+2}, 3, v{T+1}
    v_add_u32 v{T+1}, s{sT2}, v{T+1}
    ''')
    HF=ACC0
    for fr in range(4):
        for j in range(2): e(f'ds_read_b64_tr_b16 {vr(HF+4*fr+2*j,2)}, v{T+1} offset:{fr*1024+j*256}')
    for fr in range(4): e(f'buffer_store_dwordx4 {vr(HF+4*fr)}, v{vL16}, {srd(sWS)}, s{sSH} offen offset:{1024*fr} sc1', tok=f'sh{fr}')
    P.extend(stamp('h'))
    FA=0; YA=128; XV=226; ST=144
    fill={}
    def wfrag(ks,z):
        if ks<28: return 8*ks+4*z
        s,r=divmod(ks-28,4); part,sub=r>>1,r&1
        m=4*part+2*(s>>1)+z; return cdst[m]+4*(2*(s&1)+sub)
    def mfma2(ks,a,z):
        acc=(FA if ks<28 else YA)+16*(2*a+z); d=vr(acc,16)
        cin='0' if (ks==0 or (ks==28 and (a,z)!=(0,0))) else d
        return mk(f'v_mfma_f32_32x32x16_bf16 {d}, {vr(AR+4*((2*ks+a)%NA))}, {ar(wfrag(ks,z))}, {cin}')
    ex=mk(f'''
    v_lshrrev_b32 v{T}, 3, v{vL16}
    v_and_b32 v{T}, 62, v{T}
    v_and_b32 v{T+7}, 0x200, v{vL16}
    v_lshl_add_u32 v{T}, v{T+7}, 5, v{T}
    v_lshrrev_b32 v{T+1}, 2, v{T+7}
    s_lshl_b32 s{sKW}, s{sKX}, 15
    s_lshl_b32 s{sT2}, s{sCB}, 7
    s_add_u32 s{sKW}, s{sKW}, s{sT2}
    s_and_b32 s{sT2}, s{sW}, 1
    s_lshl_b32 s{sT2}, s{sT2}, 6
    s_add_u32 s{sKW}, s{sKW}, s{sT2}
    s_lshl_b32 s{sKW+1}, s{sKW}, 1
    s_lshl_b32 s{sT2}, s{sW}, 16
    s_lshl_b32 s{sKW+2}, s{sKX}, 8
    s_add_u32 s{sKW+2}, s{sKW+2}, s{sT2}
    s_add_u32 s{sKW+2}, s{sKW+2}, {STAT_BASE}
    v_lshlrev_b32 v{vT1}, 1, v{T}
    v_mov_b32 v{vT1+1}, v{T}
    v_mov_b32 v{vT2}, v{T+1}
    ''')
    for r in range(16):
        if r%4==0 and r>0: ex+=mk(f's_add_u32 s{sKW}, s{sKW}, 4096')
        ex+=mk(f'buffer_load_ushort v{XV+r}, v{vT1+1}, {srd(sX)}, s{sKW} offen offset:{1024*(r%4)}')
    for j in range(8): ex+=mk(f'buffer_load_dwordx4 {vr(ST+4*j)}, v{vT2}, {srd(sWS)}, s{sKW+2} offen offset:{16*j} sc1')
    spread(ex,2,30)
    yi=mk(f'v_lshlrev_b32 v{vD}, 16, v{vD}\nv_mul_f32 v{vD}, {f2u(LN2)}, v{vD}')
    for r in range(16):
        yi+=mk(f'''v_lshlrev_b32 v{XV+r}, 16, v{XV+r}
        v_mul_f32 v{ST+2*r+1}, v{vD}, v{ST+2*r+1}
        v_sub_f32 v{ST+2*r}, v{XV+r}, v{ST+2*r}
        v_mul_f32 v{YA+r}, v{ST+2*r}, v{ST+2*r+1}''')
    spread(yi,80,108)
    atomic(Cdrain(1),0)
    for m in range(2,8): spread(Cdrain(m), 8*(m-2)+10, 8*(m-2)+14)
    atomic(flag(3,['sh3']),o.get('f3gap',20))
    RA=vBC
    def red_addr(slot0):
        L=mk(f's_add_u32 s{sT2}, s{sW4K}, {slot0*SLOT}\nv_add_u32 v{RA}, s{sT2}, v{vL16}')
        for z in (1,2,3): L+=mk(f'v_xor_b32 v{RA+z}, {z*4096}, v{RA}')
        return L
    def red_write(acc,tok):
        L=[]
        for z in (1,2,3):
            for j in range(4): L+=mk(f'ds_write_b128 v{RA}, {vr(acc+16*z+4*j)} offset:{(z-1)*SLOT+1024*j}', tok=tok if (z,j)==(3,3) else None)
        return L
    def red_read(acc):
        L=[]
        for j in range(4):
            for z in (1,2,3): L+=mk(f'ds_read_b128 {vr(acc+16*z+4*j)}, v{RA+z} offset:{(z-1)*SLOT+1024*j}')
        return L
    fr=red_addr(PRING[0])+red_write(FA,'fw')
    spread(fr,115,128)
    atomic(mk('s_barrier',need=['fw']),131)
    f2=red_read(FA)
    for r in range(0,16,2):
        for q in (r,r+1): f2+=mk(f'v_add_f32 v{FA+q}, v{FA+q}, v{FA+16+q}\nv_add_f32 v{FA+32+q}, v{FA+32+q}, v{FA+48+q}\nv_add_f32 v{FA+q}, v{FA+q}, v{FA+32+q}')
        f2+=mk(f'''v_exp_f32 v{T+2}, -v{FA+r}
        v_exp_f32 v{T+3}, -v{FA+r+1}
        v_add_f32 v{T+2}, 1.0, v{T+2}
        v_add_f32 v{T+3}, 1.0, v{T+3}
        v_rcp_f32 v{T+2}, v{T+2}
        v_rcp_f32 v{T+3}, v{T+3}
        v_mul_f32 v{FA+r}, v{FA+r}, v{T+2}
        v_mul_f32 v{FA+r+1}, v{FA+r+1}, v{T+3}''')
    f2+=red_addr(0)
    spread(f2,132,172)
    pi2=o.get('p2issue',2); pi3=o.get('p3issue',14)
    for ks in range(44):
        for a in range(2):
            for z in range(2):
                P.extend(mfma2(ks,a,z)); P.extend(fill.get(4*ks+2*a+z,[]))
            n=2*ks+a+NA
            if n==32: P.extend(poll_check(2))
            if n==56: P.extend(poll_check(3))
            if n<88: P.extend(Aload(n))
        if ks==pi2: P.extend(poll_issue(2))
        if ks==pi3: P.extend(poll_issue(3))
        if ks==27: P.extend(stamp('f'))
    P.extend(stamp('y'))
    P.extend(red_write(YA,'yw'))
    e('s_barrier',need=['yw'])
    P.extend(red_read(YA))
    for r in range(16):
        e(f'''v_add_f32 v{YA+r}, v{YA+r}, v{YA+16+r}
        v_add_f32 v{YA+32+r}, v{YA+32+r}, v{YA+48+r}
        v_add_f32 v{YA+r}, v{YA+r}, v{YA+32+r}
        v_fma_f32 v{YA+r}, v{YA+r}, v{FA+r}, v{XV+r}''')
        if r%2==0 and r>0: e(f's_add_u32 s{sKW+1}, s{sKW+1}, 4096')
        e(f'buffer_store_dword v{YA+r}, v{vT1}, {srd(sOUT)}, s{sKW+1} offen offset:{2048*(r%2)}')
    e(f'''
    s_lshl_b32 s{sT}, s{sCB}, 8
    s_lshl_b32 s{sT2}, s{sW}, 12
    s_add_u32 s{sT}, s{sT}, s{sT2}
    s_add_u32 s{sT}, s{sT}, s{sRB}
    s_cmp_eq_u32 s{sT}, 31
    s_cselect_b32 s{sT}, 0, {OOB}
    v_mov_b32 v{T}, s{sTAG}
    s_mov_b64 exec, 1
    buffer_store_dword v{T}, off, {srd(sWS)}, s{sT} sc1
    ''')
    if o['stamps']:
        e(f's_waitcnt vmcnt(0)\ns_memrealtime s[{sKW}:{sKW+1}]' if (sKW%2==0) else f's_waitcnt vmcnt(0)\ns_memrealtime s[{sKW+1}:{sKW+2}]')
        last=sKW if sKW%2==0 else sKW+1
        e(f'''s_waitcnt lgkmcnt(0)
        s_lshl_b32 s{sT}, s2, 2
        s_add_u32 s{sT}, s{sT}, s{sW}
        s_lshl_b32 s{sT}, s{sT}, 6
        s_add_u32 s{sT}, s{sT}, {STAMP_BASE}''')
        lst=[0]+[sSTAMP+2*k for k in range(nst[0])]+[last]
        for k,s in enumerate(lst):
            e(f'v_mov_b32 v{T+1}, s{s}\nbuffer_store_dword v{T+1}, off, {srd(sWS)}, s{sT} offset:{4*k}\ns_waitcnt vmcnt(0)')
    e('L_end:\ns_endpgm')
    out=finalize(P, verbose=o.get('verbose',False))
    body=text(out)
    for s in slow:
        for l in s.split('\n'):
            l=l.strip()
            if l: body+= (l if l.endswith(':') else '    '+l)+'\n'
    body+=f'    s_endpgm\n.fill 8448-((.-{KN})/4), 4, 0xbf810000\n'
    src=make_file([dict(name=KN, body=body, grid=256, block=256, lds=163840, vgpr=512, accum=256)])
    src=src.replace('  .amdhsa_group_segment_fixed_size 0','  .amdhsa_ieee_mode 0\n  .amdhsa_group_segment_fixed_size 0')
    return src, ['start']+stampnames+['end'], out

if __name__=='__main__':
    src,_,out=gen(verbose=True)
    open(sys.argv[1] if len(sys.argv)>1 else 'k.s','w').write(src)
```
